```python
import torch

def _softmax(x, axis=-1):
    return torch.softmax(x, dim=axis)

def _gelu(x):
    return torch.nn.functional.gelu(x, approximate='tanh')

def _silu(x):
    return torch.nn.functional.silu(x)

def _sigmoid(x):
    return torch.sigmoid(x)

def _layernorm(x, axis=-1, eps=1e-05):
    m = x.mean(dim=axis, keepdim=True)
    v = x.var(dim=axis, keepdim=True, unbiased=False)
    return (x - m) / torch.sqrt(v + eps)

def _scatter_add(tgt, idx, src, axis=0):
    return tgt.clone().index_add_(axis, idx, src)

def _segment_sum(src, seg, n):
    out = torch.zeros((n,) + src.shape[1:], dtype=src.dtype)
    return out.index_add_(0, seg, src)

def _pad(x, pw):
    flat = tuple((v for pair in reversed(pw) for v in pair))
    return torch.nn.functional.pad(x, flat)
kernel_name = 'standalone__molecular_angular_painn__graph'

def setup_inputs():

    _w = lambda a: (lambda t: t.to(torch.bfloat16) if t.is_floating_point() else t)(torch.as_tensor(a))
    N, deg, D = (25000, 16, 128)
    n_rbf = max(16, 4)
    E = N * deg
    cutoff = 5.0
    freqs = (torch.arange(1, n_rbf + 1) * torch.pi / cutoff).to(float)
    return {'sv': _w((lambda *s: torch.randn(*s, dtype=torch.bfloat16) * 0.4)(N, 4, D) * 0.3), 'pos': _w((lambda *s: torch.randn(*s, dtype=torch.bfloat16) * 3.2)(N, 3) * 1.2), 'src': _w((lambda lo, hi, *s: torch.randint(lo, hi, s))(0, N, E).to(torch.int64)), 'dst': _w((lambda lo, hi, *s: torch.randint(lo, hi, s))(0, N, E).to(torch.int64)), 'freqs': _w(freqs), 'w_phi1': _w((lambda *s: torch.randn(*s, dtype=torch.bfloat16) * 3.2)(D, D) / D ** 0.5), 'w_phi2': _w((lambda *s: torch.randn(*s, dtype=torch.bfloat16) * 3.2)(D, 3 * D) / D ** 0.5), 'w_rbf': _w((lambda *s: torch.randn(*s, dtype=torch.bfloat16) * 3.2)(n_rbf, 3 * D) / n_rbf ** 0.5)}

def reference(sv, pos, src, dst, freqs, w_phi1, w_phi2, w_rbf):
    N, _, D = sv.shape
    E = src.shape[0]
    PI, cutoff = (3.141592653589793, 5.0)
    s, v = (sv[:, 0, :].clone(), sv[:, 1:, :].clone())
    r_vec = pos[src] - pos[dst]
    d = torch.sqrt((r_vec * r_vec).sum(-1) + 1e-08)
    r_hat = r_vec / d[:, None]
    rbf = torch.sin(d[:, None] * freqs[None, :]) / d[:, None]
    fcut = 0.5 * (torch.cos(PI * d / cutoff) + 1.0)
    fcut = torch.where(d < cutoff, fcut, 0.0 * d)
    Wf = rbf @ w_rbf * fcut[:, None]
    phi = (_silu(s @ w_phi1) @ w_phi2)[src]
    m = phi * Wf
    m_s, m_vv, m_vr = (m[:, :D].clone(), m[:, D:2 * D].clone(), m[:, 2 * D:].clone())
    ds = _segment_sum(m_s, dst, N)
    dv_e = m_vv[:, None, :] * v[src] + m_vr[:, None, :] * r_hat[:, :, None]
    dv = _segment_sum(dv_e.reshape(E, 3 * D), dst, N).reshape(N, 3, D)
    return sv + torch.concatenate([ds[:, None, :], dv], axis=1)
```

```python
import sys

N = 25000
E = 400000
HEAD_OFF = 0
W1P_OFF = 0x20000
W2P_OFF = 0x28000
WR_OFF = 0x40000
PHI_OFF = 0x100000
REC_OFF = 0x2000000
WS_BYTES = 0x10000000

out = []


def A(s):
    out.append(s)


def hdr():
    A("; PaiNN message passing: prep -> (node MLP | edge geometry+lists) -> aggregate")
    A("; @launch kernel=painn_prep_kernel grid=(242,1,1) block=(256,1,1) lds=0")
    A("; @launch kernel=painn_mlp_edge_kernel grid=(1759,1,1) block=(256,1,1) lds=0")
    A("; @launch kernel=painn_agg_kernel grid=(1024,1,1) block=(256,1,1) lds=0")
    A('.amdgcn_target "amdgcn-amd-amdhsa--gfx950"')
    A(".text")


def kernel_start(name):
    A(f".globl {name}")
    A(".p2align 8")
    A(f".type {name},@function")
    A(f"{name}:")


def kd(name, vgpr, sgpr=96):
    A(f".amdhsa_kernel {name}")
    A(f"  .amdhsa_next_free_vgpr {vgpr}")
    A(f"  .amdhsa_next_free_sgpr {sgpr}")
    A(f"  .amdhsa_accum_offset {(vgpr + 3) // 4 * 4}")
    A("  .amdhsa_group_segment_fixed_size 0")
    A("  .amdhsa_kernarg_size 88")
    A("  .amdhsa_user_sgpr_count 2")
    A("  .amdhsa_user_sgpr_kernarg_segment_ptr 1")
    A("  .amdhsa_system_sgpr_workgroup_id_x 1")
    A(".end_amdhsa_kernel")


def srd(d, base, nbytes, off=0):
    if off:
        A(f"  s_add_u32 s{d}, s{base}, {hex(off)}")
        A(f"  s_addc_u32 s{d+1}, s{base+1}, 0")
    else:
        A(f"  s_mov_b32 s{d}, s{base}")
        A(f"  s_mov_b32 s{d+1}, s{base+1}")
    A(f"  s_and_b32 s{d+1}, s{d+1}, 0xffff")
    A(f"  s_mov_b32 s{d+2}, {hex(nbytes)}")
    A(f"  s_mov_b32 s{d+3}, 0x00020000")


def prep():
    kernel_start("painn_prep_kernel")
    A("  s_load_dwordx2 s[4:5], s[0:1], 80   ; ws")
    A("  s_load_dwordx2 s[6:7], s[0:1], 40   ; w_phi1")
    A("  s_load_dwordx2 s[8:9], s[0:1], 48   ; w_phi2")
    A("  s_load_dwordx2 s[10:11], s[0:1], 56 ; w_rbf")
    A("  s_waitcnt lgkmcnt(0)")
    srd(12, 4, 0x80000)
    srd(16, 6, 128 * 128 * 2)
    srd(20, 8, 128 * 384 * 2)
    srd(24, 10, 16 * 384 * 2)
    A("  s_cmp_ge_u32 s2, 98")
    A("  s_cbranch_scc1 Lp_w1")
    A("  s_lshl_b32 s3, s2, 8")
    A("  v_add_u32 v1, s3, v0")
    A("  v_mov_b32 v2, -1")
    A(f"  v_cmp_gt_u32 vcc, {N}, v1")
    A("  s_and_saveexec_b64 s[40:41], vcc")
    A("  s_cbranch_execz Lp_end")
    A("  v_lshlrev_b32 v1, 2, v1")
    A("  buffer_store_dword v2, v1, s[12:15], 0 offen")
    A("  s_branch Lp_end")
    A("Lp_w1:")
    A("  s_cmp_ge_u32 s2, 130")
    A("  s_cbranch_scc1 Lp_w2")
    A("  s_sub_u32 s3, s2, 98")
    A("  s_lshl_b32 s3, s3, 8")
    A("  v_add_u32 v1, s3, v0          ; q")
    A("  v_and_b32 v2, 3, v1           ; jj")
    A("  v_bfe_u32 v3, v1, 2, 6        ; lane")
    A("  v_bfe_u32 v4, v1, 8, 3        ; s")
    A("  v_lshrrev_b32 v5, 11, v1      ; t")
    A("  v_lshrrev_b32 v6, 5, v3       ; h")
    A("  v_and_b32 v7, 31, v3          ; lane&31")
    A("  v_lshlrev_b32 v8, 4, v4")
    A("  v_lshl_add_u32 v8, v6, 3, v8")
    A("  v_lshl_add_u32 v8, v2, 1, v8")
    A("  v_lshl_add_u32 v9, v5, 5, v7")
    A("  v_lshl_add_u32 v10, v8, 7, v9")
    A("  v_lshlrev_b32 v10, 1, v10")
    A("  buffer_load_ushort v11, v10, s[16:19], 0 offen")
    A("  buffer_load_ushort v12, v10, s[16:19], 0 offen offset:256")
    A("  v_lshlrev_b32 v13, 2, v1")
    A("  s_waitcnt vmcnt(0)")
    A("  v_lshl_or_b32 v11, v12, 16, v11")
    A(f"  buffer_store_dword v11, v13, s[12:15], 0 offen offset:0 ; placeholder")
    out.pop()
    A(f"  v_add_u32 v13, {hex(W1P_OFF)}, v13")
    A("  buffer_store_dword v11, v13, s[12:15], 0 offen")
    A("  s_branch Lp_end")
    A("Lp_w2:")
    A("  s_cmp_ge_u32 s2, 226")
    A("  s_cbranch_scc1 Lp_wr")
    A("  s_sub_u32 s3, s2, 130")
    A("  s_lshl_b32 s3, s3, 8")
    A("  v_add_u32 v1, s3, v0          ; q")
    A("  v_and_b32 v2, 3, v1           ; jj")
    A("  v_bfe_u32 v3, v1, 2, 6        ; lane")
    A("  v_bfe_u32 v4, v1, 8, 1        ; sp")
    A("  v_bfe_u32 v5, v1, 9, 2        ; t")
    A("  v_lshrrev_b32 v14, 11, v1     ; u")
    A("  v_lshrrev_b32 v6, 5, v3       ; h")
    A("  v_and_b32 v7, 31, v3")
    A("  v_lshlrev_b32 v8, 5, v5")
    A("  v_lshl_add_u32 v8, v4, 4, v8")
    A("  v_and_b32 v15, 1, v2")
    A("  v_lshl_add_u32 v8, v15, 1, v8")
    A("  v_lshrrev_b32 v15, 1, v2")
    A("  v_lshl_add_u32 v8, v15, 3, v8")
    A("  v_lshl_add_u32 v8, v6, 2, v8")
    A("  v_lshl_add_u32 v9, v14, 5, v7  ; n")
    A("  v_mul_u32_u24 v10, 384, v8")
    A("  v_add_lshl_u32 v10, v10, v9, 1")
    A("  buffer_load_ushort v11, v10, s[20:23], 0 offen")
    A("  buffer_load_ushort v12, v10, s[20:23], 0 offen offset:768")
    A("  v_lshlrev_b32 v13, 2, v1")
    A("  s_waitcnt vmcnt(0)")
    A("  v_lshl_or_b32 v11, v12, 16, v11")
    A(f"  v_add_u32 v13, {hex(W2P_OFF)}, v13")
    A("  buffer_store_dword v11, v13, s[12:15], 0 offen")
    A("  s_branch Lp_end")
    A("Lp_wr:")
    A("  s_cmp_ge_u32 s2, 242")
    A("  s_cbranch_scc1 Lp_end")
    A("  s_sub_u32 s3, s2, 226")
    A("  s_lshl_b32 s3, s3, 8")
    A("  v_add_u32 v1, s3, v0          ; q")
    A("  v_lshrrev_b32 v2, 6, v1       ; L")
    A("  v_and_b32 v3, 63, v1          ; r")
    A("  v_cmp_gt_u32 vcc, 48, v3")
    A("  s_and_saveexec_b64 s[40:41], vcc")
    A("  s_cbranch_execz Lp_end")
    A("  v_lshrrev_b32 v4, 4, v3       ; seg")
    A("  v_bfe_u32 v5, v3, 3, 1        ; cc")
    A("  v_and_b32 v6, 7, v3           ; kp")
    A("  v_lshlrev_b32 v7, 7, v4")
    A("  v_lshl_add_u32 v7, v2, 1, v7")
    A("  v_add_u32 v7, v7, v5")
    A("  v_mul_u32_u24 v8, 768, v6")
    A("  v_add_lshl_u32 v8, v8, v7, 1")
    A("  buffer_load_ushort v11, v8, s[24:27], 0 offen")
    A("  buffer_load_ushort v12, v8, s[24:27], 0 offen offset:768")
    A("  v_mul_u32_u24 v13, 48, v2")
    A("  v_add_lshl_u32 v13, v13, v3, 2")
    A("  s_waitcnt vmcnt(0)")
    A("  v_lshl_or_b32 v11, v12, 16, v11")
    A(f"  v_add_u32 v13, {hex(WR_OFF)}, v13")
    A("  buffer_store_dword v11, v13, s[12:15], 0 offen")
    A("Lp_end:")
    A("  s_endpgm")


def bf16r(v, tmp=None):
    A(f"  v_cvt_pk_bf16_f32 v{v}, v{v}, v{v}")
    A(f"  v_lshlrev_b32 v{v}, 16, v{v}")


def mlp_edge():
    kernel_start("painn_mlp_edge_kernel")
    A("  s_load_dwordx2 s[4:5], s[0:1], 80   ; ws")
    A("  s_load_dwordx2 s[6:7], s[0:1], 0    ; sv")
    A("  s_load_dwordx2 s[8:9], s[0:1], 8    ; pos")
    A("  s_load_dwordx2 s[10:11], s[0:1], 16 ; src")
    A("  s_load_dwordx2 s[12:13], s[0:1], 24 ; dst")
    A("  s_load_dwordx2 s[14:15], s[0:1], 32 ; freqs")
    A("  s_cmp_ge_u32 s2, 196")
    A("  s_cbranch_scc1 Le_start")
    A("  s_waitcnt lgkmcnt(0)")
    srd(16, 4, 0x80000)
    srd(20, 6, N * 1024)
    srd(24, 4, N * 768, PHI_OFF)
    A("  v_lshrrev_b32 v1, 6, v0       ; wave")
    A("  v_and_b32 v2, 63, v0          ; lane")
    A("  v_and_b32 v3, 31, v2          ; l&31")
    A("  v_lshrrev_b32 v4, 5, v2       ; h")
    A("  s_lshl_b32 s3, s2, 7")
    A("  v_lshl_add_u32 v5, v1, 5, v3")
    A("  v_add_u32 v5, s3, v5          ; node")
    A("  v_lshlrev_b32 v6, 10, v5      ; node*1024")
    A("  v_lshl_add_u32 v6, v4, 4, v6  ; + h*16")
    A("  v_mul_u32_u24 v7, 768, v5")
    A("  v_lshl_add_u32 v7, v4, 3, v7")
    A("  v_lshlrev_b32 v8, 4, v2")
    for s in range(8):
        A(f"  buffer_load_dwordx4 v[{16+4*s}:{19+4*s}], v6, s[20:23], 0 offen offset:{32*s}")
    sets = [48, 80]

    def load_tile(setbase, woff):
        A(f"  s_mov_b32 s30, {hex(woff)}")
        A(f"  s_mov_b32 s31, {hex(woff+4096)}")
        for s in range(8):
            A(f"  buffer_load_dwordx4 v[{setbase+4*s}:{setbase+3+4*s}], v8, s[16:19], s{30+s//4} offen offset:{1024*(s%4)}")

    tiles = [("w1", t) for t in range(4)] + [("w2", u) for u in range(12)]

    def toff(i):
        k, j = tiles[i]
        return (W1P_OFF + j * 8192) if k == "w1" else (W2P_OFF + j * 8192)

    load_tile(sets[0], toff(0))
    for i, (k, j) in enumerate(tiles):
        cur = sets[i & 1]
        if i + 1 < len(tiles):
            load_tile(sets[(i + 1) & 1], toff(i + 1))
            A("  s_waitcnt vmcnt(8)")
        else:
            A("  s_waitcnt vmcnt(0)")
        for s in range(8):
            bsrc = (16 + 4 * s) if k == "w1" else (128 + 4 * s)
            c = "0" if s == 0 else "v[112:127]"
            A(f"  v_mfma_f32_32x32x16_bf16 v[112:127], v[{cur+4*s}:{cur+3+4*s}], v[{bsrc}:{bsrc+3}], {c}")
        A("  s_nop 7")
        A("  s_nop 3")
        if k == "w1":
            for r in range(0, 16, 2):
                A(f"  v_cvt_pk_bf16_f32 v9, v{112+r}, v{113+r}")
                A("  v_lshlrev_b32 v10, 16, v9")
                A("  v_and_b32 v11, 0xffff0000, v9")
                A("  v_mul_f32 v12, 0xbfb8aa3b, v10")
                A("  v_mul_f32 v13, 0xbfb8aa3b, v11")
                A("  v_exp_f32 v12, v12")
                A("  v_exp_f32 v13, v13")
                A("  s_nop 0")
                A("  v_add_f32 v12, 1.0, v12")
                A("  v_add_f32 v13, 1.0, v13")
                A("  v_rcp_f32 v12, v12")
                A("  v_rcp_f32 v13, v13")
                A("  s_nop 0")
                A("  v_mul_f32 v12, v10, v12")
                A("  v_mul_f32 v13, v11, v13")
                A(f"  v_cvt_pk_bf16_f32 v{128 + 8*j + r//2}, v12, v13")
            A("  s_nop 1")
        else:
            for g in range(4):
                A(f"  v_cvt_pk_bf16_f32 v{10+2*(g&1)}, v{112+4*g}, v{113+4*g}")
                A(f"  v_cvt_pk_bf16_f32 v{11+2*(g&1)}, v{114+4*g}, v{115+4*g}")
                A(f"  buffer_store_dwordx2 v[{10+2*(g&1)}:{11+2*(g&1)}], v7, s[24:27], 0 offen offset:{j*64 + g*16}")
    A("  s_endpgm")

    A("Le_start:")
    A("  s_waitcnt lgkmcnt(0)")
    A("  s_load_dwordx8 s[40:47], s[14:15], 0")
    srd(16, 8, N * 6)
    srd(20, 10, E * 4)
    srd(24, 12, E * 4)
    srd(28, 4, WS_BYTES)
    A("  s_sub_u32 s3, s2, 196")
    A("  s_lshl_b32 s3, s3, 8")
    A("  v_add_u32 v1, s3, v0          ; e")
    A(f"  v_cmp_gt_u32 vcc, {E}, v1")
    A("  s_and_saveexec_b64 s[36:37], vcc")
    A("  s_cbranch_execz Le_end")
    A("  v_lshlrev_b32 v2, 2, v1")
    A("  buffer_load_dword v3, v2, s[20:23], 0 offen   ; src")
    A("  buffer_load_dword v4, v2, s[24:27], 0 offen   ; dst")
    A("  s_waitcnt vmcnt(0)")
    A("  v_mul_u32_u24 v5, 6, v3")
    A("  v_mul_u32_u24 v6, 6, v4")
    for c in range(3):
        A(f"  buffer_load_ushort v{8+c}, v5, s[16:19], 0 offen offset:{2*c}")
        A(f"  buffer_load_ushort v{12+c}, v6, s[16:19], 0 offen offset:{2*c}")
    A("  s_waitcnt vmcnt(0) lgkmcnt(0)")
    for c in range(3):
        A(f"  v_lshlrev_b32 v{8+c}, 16, v{8+c}")
        A(f"  v_lshlrev_b32 v{12+c}, 16, v{12+c}")
        A(f"  v_sub_f32 v{8+c}, v{8+c}, v{12+c}")
        bf16r(8 + c)
    for c in range(3):
        A(f"  v_mul_f32 v{12+c}, v{8+c}, v{8+c}")
        bf16r(12 + c)
    A("  v_add_f32 v12, v12, v13")
    A("  v_add_f32 v12, v12, v14")
    bf16r(12)
    A("  v_add_f32 v12, 0x322bcc77, v12   ; +1e-8")
    bf16r(12)
    A("  v_sqrt_f32 v12, v12")
    A("  s_nop 0")
    bf16r(12)
    A("  v_cmp_gt_f32 vcc, 0x40a00000, v12   ; d < 5")
    A("  s_and_saveexec_b64 s[38:39], vcc")
    A("  s_cbranch_execz Le_end")
    A("  v_rcp_f32 v13, v12")
    A("  s_nop 0")
    for c in range(3):
        A(f"  v_mul_f32 v{18+c}, v{8+c}, v13")
        bf16r(18 + c)
    A("  v_mov_b32 v17, v3  ; src")
    A("  v_mul_f32 v21, 0x40490fdb, v12")
    bf16r(21)
    A("  v_mul_f32 v21, 0x3e4ccccd, v21")
    bf16r(21)
    A("  v_mul_f32 v21, 0.15915494, v21")
    A("  v_cos_f32 v21, v21")
    A("  s_nop 0")
    bf16r(21)
    A("  v_add_f32 v21, 1.0, v21")
    bf16r(21)
    A("  v_mul_f32 v21, 0.5, v21")
    bf16r(21)
    A("  v_mov_b32 v22, 0")
    A("  v_mov_b32 v23, 0")
    for kp in range(8):
        A(f"  s_lshl_b32 s48, s{40+kp}, 16")
        A(f"  s_and_b32 s49, s{40+kp}, 0xffff0000")
        A("  v_mul_f32 v32, s48, v12")
        A("  v_mul_f32 v33, s49, v12")
        A("  v_cvt_pk_bf16_f32 v32, v32, v33")
        A("  v_lshlrev_b32 v33, 16, v32")
        A("  v_and_b32 v34, 0xffff0000, v32")
        A("  v_mul_f32 v33, 0.15915494, v33")
        A("  v_mul_f32 v34, 0.15915494, v34")
        A("  v_sin_f32 v33, v33")
        A("  v_sin_f32 v34, v34")
        A("  s_nop 0")
        A("  v_cvt_pk_bf16_f32 v32, v33, v34")
        A("  v_lshlrev_b32 v33, 16, v32")
        A("  v_and_b32 v34, 0xffff0000, v32")
        A("  v_mul_f32 v33, v33, v13")
        A("  v_mul_f32 v34, v34, v13")
        A(f"  v_cvt_pk_bf16_f32 v{24+kp}, v33, v34")
    A("  v_lshlrev_b32 v35, 2, v4")
    A("  v_mov_b32 v16, v1")
    A("  buffer_atomic_swap v16, v35, s[28:31], 0 offen sc0")
    A("  v_lshlrev_b32 v36, 6, v1")
    A(f"  v_add_u32 v36, {hex(REC_OFF)}, v36")
    A("  buffer_store_dwordx4 v[24:27], v36, s[28:31], 0 offen offset:32")
    A("  buffer_store_dwordx4 v[28:31], v36, s[28:31], 0 offen offset:48")
    A("  s_waitcnt vmcnt(2)")
    A("  buffer_store_dwordx4 v[16:19], v36, s[28:31], 0 offen")
    A("  buffer_store_dwordx4 v[20:23], v36, s[28:31], 0 offen offset:16")
    A("Le_end:")
    A("  s_endpgm")


def agg():
    kernel_start("painn_agg_kernel")
    A("  s_load_dwordx2 s[4:5], s[0:1], 80   ; ws")
    A("  s_load_dwordx2 s[6:7], s[0:1], 0    ; sv")
    A("  s_load_dwordx2 s[8:9], s[0:1], 64   ; out")
    A("  v_lshrrev_b32 v1, 6, v0")
    A("  v_and_b32 v2, 63, v0          ; lane")
    A("  s_nop 0")
    A("  v_readfirstlane_b32 s3, v1")
    A("  s_waitcnt lgkmcnt(0)")
    srd(12, 6, N * 1024)
    srd(16, 8, N * 1024)
    srd(20, 4, N * 768, PHI_OFF)
    srd(24, 4, 0x80000)
    A(f"  s_add_u32 s28, s4, {hex(REC_OFF)}")
    A("  s_addc_u32 s29, s5, 0")
    A("  s_cmp_ge_u32 s2, 1024")
    A("  s_cbranch_scc1 La_end")
    A("  s_lshl_b32 s30, s2, 2")
    A("  s_add_u32 s30, s30, s3")
    A("  v_mul_u32_u24 v3, 192, v2")
    A("  v_lshlrev_b32 v4, 2, v2       ; lane*4")
    A(f"  s_mov_b32 s31, {hex(WR_OFF)}")
    for i in range(12):
        A(f"  buffer_load_dwordx4 v[{16+4*i}:{19+4*i}], v3, s[24:27], s31 offen offset:{16*i}")
    A("  s_waitcnt vmcnt(0)")
    A("La_node:")
    A(f"  s_cmp_ge_u32 s30, {N}")
    A("  s_cbranch_scc1 La_end")
    A("  s_lshl_b32 s31, s30, 2")
    A("  s_load_dword s33, s[4:5], s31   ; head")
    A("  s_lshl_b32 s32, s30, 10")
    for r in range(4):
        A(f"  buffer_load_dword v{64+r}, v4, s[12:15], s32 offen offset:{256*r}")
    for r in range(8):
        A(f"  v_mov_b32 v{68+r}, 0")
    A("  s_waitcnt lgkmcnt(0)")
    A("La_edge:")
    A("  s_cmp_eq_u32 s33, -1")
    A("  s_cbranch_scc1 La_fin")
    A("  s_lshl_b32 s34, s33, 6")
    A("  s_add_u32 s36, s28, s34")
    A("  s_addc_u32 s37, s29, 0")
    A("  s_load_dwordx16 s[48:63], s[36:37], 0")
    A("  s_waitcnt lgkmcnt(0)")
    A("  s_mul_i32 s34, s49, 768")
    A("  s_lshl_b32 s35, s49, 10")
    for r in range(3):
        A(f"  buffer_load_dword v{76+r}, v4, s[20:23], s34 offen offset:{256*r}")
    for r in range(3):
        A(f"  buffer_load_dword v{79+r}, v4, s[12:15], s35 offen offset:{256*(r+1)}")
    A("  s_mov_b32 s33, s48")
    for c in range(6):
        for kp in range(8):
            srcc = "0" if kp == 0 else f"v{82+c}"
            A(f"  v_dot2_f32_bf16 v{82+c}, s{56+kp}, v{16+8*c+kp}, {srcc}")
    for c in range(6):
        A(f"  v_mul_f32 v{82+c}, s53, v{82+c}")
    A("  s_waitcnt vmcnt(0)")
    for r in range(3):
        A(f"  v_lshlrev_b32 v{88+2*r}, 16, v{76+r}")
        A(f"  v_and_b32 v{89+2*r}, 0xffff0000, v{76+r}")
    A("  v_fmac_f32 v68, v88, v82")
    A("  v_fmac_f32 v69, v89, v83")
    for c in range(2, 6):
        A(f"  v_mul_f32 v{82+c}, v{88+c}, v{82+c}")
    for x in range(3):
        A(f"  v_lshlrev_b32 v88, 16, v{79+x}")
        A(f"  v_and_b32 v89, 0xffff0000, v{79+x}")
        A(f"  v_fmac_f32 v{70+2*x}, v84, v88")
        A(f"  v_fmac_f32 v{71+2*x}, v85, v89")
        A(f"  v_fmac_f32 v{70+2*x}, s{50+x}, v86")
        A(f"  v_fmac_f32 v{71+2*x}, s{50+x}, v87")
    A("  s_branch La_edge")
    A("La_fin:")
    A("  s_waitcnt vmcnt(0)")
    for r in range(4):
        A(f"  v_lshlrev_b32 v88, 16, v{64+r}")
        A(f"  v_and_b32 v89, 0xffff0000, v{64+r}")
        A(f"  v_add_f32 v88, v88, v{68+2*r}")
        A(f"  v_add_f32 v89, v89, v{69+2*r}")
        A(f"  v_cvt_pk_bf16_f32 v{90+r}, v88, v89")
        A(f"  buffer_store_dword v{90+r}, v4, s[16:19], s32 offen offset:{256*r}")
    A("  s_add_u32 s30, s30, 4096")
    A("  s_branch La_node")
    A("La_end:")
    A("  s_endpgm")


hdr()
prep()
mlp_edge()
agg()
A('.section .rodata,"a"')
A(".p2align 6")
kd("painn_prep_kernel", 16)
A(".p2align 6")
kd("painn_mlp_edge_kernel", 160)
A(".p2align 6")
kd("painn_agg_kernel", 96)
open(sys.argv[1] if len(sys.argv) > 1 else "standalone__molecular_angular_painn__graph.s", "w").write("\n".join(out) + "\n")
```
